```python
import torch

def _softmax(x, axis=-1):
    return torch.softmax(x, dim=axis)
def _gelu(x):
    return torch.nn.functional.gelu(x, approximate="tanh")
def _silu(x):
    return torch.nn.functional.silu(x)
def _sigmoid(x):
    return torch.sigmoid(x)
def _layernorm(x, axis=-1, eps=1e-5):
    m = x.mean(dim=axis, keepdim=True)
    v = x.var(dim=axis, keepdim=True, unbiased=False)
    return (x - m) / torch.sqrt(v + eps)
def _scatter_add(tgt, idx, src, axis=0):
    return tgt.clone().index_add_(axis, idx, src)
def _segment_sum(src, seg, n):
    out = torch.zeros((n,) + src.shape[1:], dtype=src.dtype)
    return out.index_add_(0, seg, src)
def _pad(x, pw):
    flat = tuple(v for pair in reversed(pw) for v in pair)
    return torch.nn.functional.pad(x, flat)

kernel_name = 'sequential_preLN__ssm_conv_s4d__glu_gated_geglu__prompt'

def setup_inputs():

    _w = (lambda a: (lambda t: t.to(torch.bfloat16) if t.is_floating_point() else t)(torch.as_tensor(a)))
    def _A_setup():
        Bsz, L, D, N = 1, 2048, 512, 128
        return {
            "u": _w((lambda *s: torch.randn(*s, dtype=torch.bfloat16) * 0.05)(Bsz, L, D)),
            "log_A_real": _w((lambda *s: torch.randn(*s, dtype=torch.bfloat16) * 6.4)(D, N) * 0.5),
            "A_imag": _w((lambda *s: torch.randn(*s, dtype=torch.bfloat16) * 0.05)(D, N) * 3.14),
            "C_real": _w((lambda *s: torch.randn(*s, dtype=torch.bfloat16) * 0.05)(D, N) / N ** 0.5),
            "C_imag": _w((lambda *s: torch.randn(*s, dtype=torch.bfloat16) * 0.05)(D, N) / N ** 0.5),
            "log_dt": _w((lambda *s: torch.randn(*s, dtype=torch.bfloat16) * 0.05)(D) * 0.5 - 4.0),
            "D_skip": _w((lambda *s: torch.randn(*s, dtype=torch.bfloat16) * 0.05)(D)),
        }
    _A_in = _A_setup()

    def _B_setup():
        B, S, Dm, Df = 1, 2048, 512, 1376
        return {
            "x": _w((lambda *s: torch.randn(*s, dtype=torch.bfloat16) * 0.05)(B, S, Dm)),
            "w_gate": _w((lambda *s: torch.randn(*s, dtype=torch.bfloat16) * 0.4)(Dm, Df) * (Dm ** -0.5)),
            "w_up": _w((lambda *s: torch.randn(*s, dtype=torch.bfloat16) * 0.4)(Dm, Df) * (Dm ** -0.5)),
            "w_down": _w((lambda *s: torch.randn(*s, dtype=torch.bfloat16) * 0.4)(Df, Dm) * (Df ** -0.5)),
        }
    _B_in = _B_setup()

    return {
        "A_u": _A_in["u"],
        "A_log_A_real": _A_in["log_A_real"],
        "A_A_imag": _A_in["A_imag"],
        "A_C_real": _A_in["C_real"],
        "A_C_imag": _A_in["C_imag"],
        "A_log_dt": _A_in["log_dt"],
        "A_D_skip": _A_in["D_skip"],
        "B_x": _B_in["x"],
        "B_w_gate": _B_in["w_gate"],
        "B_w_up": _B_in["w_up"],
        "B_w_down": _B_in["w_down"],
    }

def reference(A_u, A_log_A_real, A_A_imag, A_C_real, A_C_imag, A_log_dt, A_D_skip, B_x, B_w_gate, B_w_up, B_w_down):
    def _A_ref(u, log_A_real, A_imag, C_real, C_imag, log_dt, D_skip):
        L = u.shape[1]
        dt = torch.exp(log_dt)
        A = -torch.exp(log_A_real) + 1j * A_imag
        C = (C_real + 1j * C_imag) * dt[:, None]
        pos = (lambda x, dt: x.to(dt))(torch.arange(L), log_dt.dtype)
        P = torch.exp((A * dt[:, None])[:, :, None] * pos[None, None, :])
        K = 2.0 * torch.einsum("dn,dnl->dl", C, P).real
        L2 = 2 * L
        u_t = (lambda x, *d: x.permute(*d))(u, 0, 2, 1)
        Kf = (lambda x, *a, **k: torch.fft.rfft(x.float(), *a, **k))(K, L2)
        Uf = (lambda x, *a, **k: torch.fft.rfft(x.float(), *a, **k))(u_t, L2)
        y = (lambda x, *a, **k: torch.fft.irfft(x, *a, **k).to(torch.bfloat16))(Uf * Kf[None, :, :], L2)[:, :, :L]
        y = (lambda x, *d: x.permute(*d))(y, 0, 2, 1)
        return y + u * D_skip[None, None, :]

    def _B_ref(x, w_gate, w_up, w_down):
        g = torch.einsum("bsd,df->bsf", x, w_gate)
        u = torch.einsum("bsd,df->bsf", x, w_up)
        h = _gelu(g) * u
        return torch.einsum("bsf,fd->bsd", h, w_down)

    x = A_u
    h = x + _A_ref(_layernorm(x, axis=-1), A_log_A_real, A_A_imag, A_C_real, A_C_imag, A_log_dt, A_D_skip)
    h2 = h + _B_ref(_layernorm(h, axis=-1), B_w_gate, B_w_up, B_w_down)
    return h2
```

```python
import re
import struct


def f32(x):
    return "0x%08x" % struct.unpack("<I", struct.pack("<f", x))[0]


def f32bits(x):
    return struct.unpack("<I", struct.pack("<f", x))[0]


_REG = re.compile(r"^(-|\|)?(abs\()?([vsa])(\d+|\[(\d+):(\d+)\])\)?\|?$")
TRANS = ("v_exp_f32", "v_log_f32", "v_rcp_f32", "v_rsq_f32", "v_sqrt_f32", "v_sin_f32", "v_cos_f32",
         "v_rcp_iflag_f32")


def regs_of(op):
    op = op.strip()
    if op == "vcc":
        return {("s", 106), ("s", 107)}
    if op == "exec":
        return {("s", 126), ("s", 127)}
    if op == "m0":
        return {("s", 124)}
    if op in ("vcc_lo",):
        return {("s", 106)}
    if op in ("vcc_hi",):
        return {("s", 107)}
    m = _REG.match(op)
    if not m:
        return set()
    k = m.group(3)
    if m.group(5) is not None:
        return {(k, i) for i in range(int(m.group(5)), int(m.group(6)) + 1)}
    return {(k, int(m.group(4)))}


def split_ops(s):
    out, depth, cur = [], 0, ""
    for ch in s:
        if ch in "[(":
            depth += 1
        if ch in "])":
            depth -= 1
        if ch == "," and depth == 0:
            out.append(cur.strip())
            cur = ""
        else:
            cur += ch
    if cur.strip():
        out.append(cur.strip())
    return out


class Ins:
    __slots__ = ("text", "mn", "defs", "uses", "kind", "passes", "srcc", "srcab", "slots", "dpp", "wide_store",
                 "store_data", "trans", "lds_dma", "opsel")

    def __init__(self, text):
        self.text = text
        t = text.split(";")[0].strip()
        parts = t.split(None, 1)
        mn = parts[0]
        rest = parts[1] if len(parts) > 1 else ""
        ops = split_ops(rest)
        mods = ""
        if ops:
            last = ops[-1].split(None, 1)
            ops[-1] = last[0]
            mods = last[1] if len(last) > 1 else ""
        self.mn = mn
        self.defs, self.uses = set(), set()
        self.passes = 0
        self.srcc, self.srcab = set(), set()
        self.slots = 1
        self.dpp = ("_dpp" in mn) or ("row_" in mods) or ("quad_perm" in mods) or ("wave_" in mods)
        self.wide_store = False
        self.store_data = set()
        self.trans = mn.replace("_e32", "").replace("_e64", "") in TRANS
        self.lds_dma = False
        self.opsel = False
        R = [regs_of(o) for o in ops]
        if mn == "s_nop":
            self.kind = "nop"
            self.slots = int(ops[0], 0) + 1
        elif mn.startswith("v_mfma"):
            self.kind = "mfma"
            self.passes = 8 if "32x32x16" in mn else 4 if "16x16x32" in mn else None
            assert self.passes, mn
            self.defs = R[0]
            self.srcab = R[1] | R[2]
            self.srcc = R[3]
            self.uses = self.srcab | self.srcc
        elif mn.startswith("v_"):
            self.kind = "valu"
            if mn.startswith("v_cmpx"):
                self.defs = R[0] | regs_of("exec")
                self.uses = set().union(*R[1:])
            elif mn.startswith("v_cmp"):
                self.defs = R[0]
                self.uses = set().union(*R[1:])
            elif mn.startswith(("v_swap", "v_permlane16_swap", "v_permlane32_swap")):
                self.defs = R[0] | R[1]
                self.uses = R[0] | R[1]
            elif "_co_" in mn or mn.startswith(("v_mad_u64", "v_div_scale")):
                self.defs = R[0] | R[1]
                self.uses = set().union(*R[2:])
            else:
                self.defs = R[0]
                self.uses = set().union(*R[1:]) if len(R) > 1 else set()
                if mn.startswith(("v_fmac", "v_dot2c", "v_writelane")) or self.dpp:
                    self.uses |= R[0]
                if mn.startswith("v_cndmask") and len(ops) == 3:
                    self.uses |= regs_of("vcc")
            if "sdwa" in mn and "dst_sel:DWORD" not in mods:
                self.opsel = True
        elif mn.startswith("ds_"):
            self.kind = "ds"
            if mn.startswith(("ds_read", "ds_bpermute", "ds_permute", "ds_swizzle")):
                self.defs = R[0]
                self.uses = set().union(*R[1:])
            else:
                self.uses = set().union(*R)
        elif mn.startswith(("buffer_", "global_")):
            self.kind = "vmem"
            lds = re.search(r"\blds\b", mods) is not None or "_lds_" in mn
            if mn in ("buffer_inv", "buffer_wbl2"):
                pass
            elif lds:
                self.lds_dma = True
                self.uses = set().union(*R) | regs_of("m0")
            elif "_load" in mn:
                self.defs = R[0]
                self.uses = set().union(*R[1:])
                if "d16" in mn:
                    self.uses |= R[0]
            else:
                self.uses = set().union(*R)
                data = R[0] if mn.startswith("buffer_") else R[1]
                self.store_data = data
                self.wide_store = mn.endswith(("x3", "x4"))
                if "atomic" in mn and "sc0" in mods:
                    self.defs = R[0]
        elif mn.startswith("s_"):
            self.kind = "salu"
            if mn.startswith(("s_cmp", "s_waitcnt", "s_barrier", "s_branch", "s_cbranch", "s_endpgm", "s_setprio",
                              "s_sleep", "s_bitcmp")):
                self.uses = set().union(*R) if R else set()
            else:
                self.defs = R[0] if R else set()
                self.uses = set().union(*R[1:]) if len(R) > 1 else set()
                if "saveexec" in mn:
                    self.defs |= regs_of("exec")
        else:
            raise ValueError("unknown instruction: " + text)


def vonly(s):
    return {r for r in s if r[0] in "va"}


def sonly(s):
    return {r for r in s if r[0] == "s"}


EXEC = regs_of("exec")
M0 = regs_of("m0")


def need(p, c):
    n = 0
    if p.kind == "valu":
        pv, ps = vonly(p.defs), sonly(p.defs)
        if c.kind == "mfma" and pv & c.uses:
            n = max(n, 2)
        if c.kind == "mfma" and ps & EXEC:
            n = max(n, 4)
        if c.kind == "valu":
            if c.dpp and pv & c.uses:
                n = max(n, 2)
            if c.dpp and ps & EXEC:
                n = max(n, 5)
            if c.mn.startswith("v_permlane") and pv & c.uses:
                n = max(n, 2)
            if c.mn.startswith("v_permlane") and ps & EXEC:
                n = max(n, 4)
            if c.mn.startswith(("v_readlane", "v_readfirstlane")) and pv & c.uses:
                n = max(n, 1)
            if c.mn.startswith(("v_readlane", "v_readfirstlane", "v_writelane")) and ps & EXEC:
                n = max(n, 4)
            if c.mn.startswith(("v_readlane", "v_writelane")) and ps & c.uses:
                n = max(n, 4)
            if ps & c.uses:
                n = max(n, 2)
            if c.mn.startswith("v_div_fmas") and ps:
                n = max(n, 4)
            if p.trans and not c.trans and pv & c.uses:
                n = max(n, 1)
            if p.trans and c.trans and pv & c.uses:
                n = max(n, 1)
            if p.opsel and pv & (c.uses | c.defs):
                n = max(n, 1)
            if p.mn.startswith("v_dot"):
                if pv & (c.uses | c.defs):
                    same = p.mn == c.mn
                    n = max(n, 0 if same and p.defs == c.defs else 3)
        if p.mn.startswith("v_dot") and c.kind in ("mfma", "vmem", "ds") and pv & (c.uses | c.defs):
            n = max(n, 3)
        if p.trans and c.kind in ("vmem", "ds") and pv & c.uses:
            n = max(n, 1)
        if c.kind == "vmem" and ps & c.uses:
            n = max(n, 5)
        if c.kind == "salu" and ps & c.uses:
            n = max(n, 1)
    if p.kind == "salu":
        if p.defs & M0 and (c.lds_dma or "addtid" in c.mn or c.mn.startswith("s_movrel")):
            n = max(n, 1)
    if p.kind == "vmem" and p.wide_store:
        if p.store_data & c.defs:
            n = max(n, 2 if c.kind in ("valu", "mfma") else 1)
    if p.kind == "mfma":
        P = p.passes
        if c.kind == "mfma":
            if p.defs & c.srcab:
                n = max(n, {4: 8, 8: 12}[P])
            if p.defs & c.srcc:
                if not (p.defs == c.srcc and c.passes == P):
                    n = max(n, {4: 6, 8: 10}[P])
            elif p.defs & c.defs:
                n = max(n, {4: 8, 8: 12}[P])
        elif c.kind in ("valu", "vmem", "ds"):
            if p.defs & (c.uses | c.defs):
                n = max(n, {4: 8, 8: 12}[P])
            if c.kind == "valu" and p.srcc & c.defs:
                n = max(n, {4: 3, 8: 7}[P])
    return n


class Asm:
    def __init__(self):
        self.lines = []
        self.hist = []
        self.nops = 0

    def raw(self, text):
        self.lines.append(text)

    def label(self, name):
        self.lines.append(name + ":")

    def comment(self, text):
        self.lines.append("    ; " + text)

    def reset(self):
        self.hist = []

    def fence(self, n=13):
        self("s_nop %d" % (n - 1))

    def __call__(self, text):
        for ln in text.strip().split("\n"):
            ln = ln.strip()
            if not ln or ln.startswith(";"):
                continue
            ins = Ins(ln)
            dist, req = 0, 0
            for p in reversed(self.hist):
                r = need(p, ins) - dist
                req = max(req, r)
                dist += p.slots
                if dist >= 20:
                    break
            if req > 0:
                nop = Ins("s_nop %d" % (req - 1))
                self.lines.append("    " + nop.text)
                self.hist.append(nop)
                self.nops += 1
            self.lines.append("    " + ln)
            self.hist.append(ins)
            if len(self.hist) > 40:
                self.hist = self.hist[-30:]

    def text(self):
        return "\n".join(self.lines) + "\n"


def vr(b, n=1):
    return "v%d" % b if n == 1 else "v[%d:%d]" % (b, b + n - 1)


def ar(b, n=1):
    return "a%d" % b if n == 1 else "a[%d:%d]" % (b, b + n - 1)


def sr(b, n=1):
    return "s%d" % b if n == 1 else "s[%d:%d]" % (b, b + n - 1)


def kernel_begin(a, name):
    a.raw(".text")
    a.raw(".globl %s" % name)
    a.raw(".p2align 8")
    a.raw(".type %s,@function" % name)
    a.label(name)
    a.reset()


def kernel_desc(a, name, vgpr, sgpr, accum=None):
    if accum is None:
        accum = (vgpr + 3) // 4 * 4
    a.raw('.section .rodata,"a"')
    a.raw(".p2align 6")
    a.raw(".amdhsa_kernel %s" % name)
    a.raw("  .amdhsa_next_free_vgpr %d" % vgpr)
    a.raw("  .amdhsa_next_free_sgpr %d" % sgpr)
    a.raw("  .amdhsa_accum_offset %d" % accum)
    a.raw("  .amdhsa_group_segment_fixed_size 0")
    a.raw("  .amdhsa_kernarg_size 112")
    a.raw("  .amdhsa_user_sgpr_count 2")
    a.raw("  .amdhsa_user_sgpr_kernarg_segment_ptr 1")
    a.raw("  .amdhsa_system_sgpr_workgroup_id_x 1")
    a.raw(".end_amdhsa_kernel")


def srd(a, d, base, nbytes, off=0):
    if off:
        a("s_add_u32 s%d, s%d, 0x%x" % (d, base, off))
        a("s_addc_u32 s%d, s%d, 0" % (d + 1, base + 1))
    else:
        a("s_mov_b32 s%d, s%d" % (d, base))
        a("s_mov_b32 s%d, s%d" % (d + 1, base + 1))
    a("s_mov_b32 s%d, 0x%x" % (d + 2, nbytes))
    a("s_mov_b32 s%d, 0x20000" % (d + 3))
```

```python
import math
import sys
import numpy as np
from asmlib import *

NAME = "sequential_preLN__ssm_conv_s4d__glu_gated_geglu__prompt"

KA_X, KA_LAR, KA_AI, KA_CR, KA_CI, KA_LDT, KA_DSK, KA_BX, KA_WG, KA_WU, KA_WD, KA_OUT, KA_DBG, KA_WS = \
    [8 * i for i in range(14)]

WS_STATS = 0x0
WS_HP = 0x100000
WS_W1P = 0x400000
WS_W2P = 0x800000
WS_HM = 0xA00000
SZ_STATS = 2048 * 8
SZ_HP = 256 * 2048 * 4
SZ_W1P = 90 * 33 * 1024
SZ_W2P = 16 * 86 * 1024
SZ_HM = 64 * 86 * 1024
ONES = 0x3F803F80


def wave_id(a, sdst, vtmp):
    a(f"v_lshrrev_b32 v{vtmp}, 6, v0")
    a(f"v_readfirstlane_b32 s{sdst}, v{vtmp}")


def ln_final(a, vs, vq, t0, t1, vm, vrinv):
    a(f"v_mul_f32 v{vs}, {f32(1/512)}, v{vs}")
    a(f"v_mul_f32 v{vq}, {f32(1/512)}, v{vq}")
    a(f"v_fma_f32 v{vq}, -v{vs}, v{vs}, v{vq}")
    a(f"v_max_f32 v{vq}, 0, v{vq}")
    a(f"v_cvt_pk_bf16_f32 v{t0}, v{vs}, v{vq}")
    a(f"v_lshlrev_b32 v{vm}, 16, v{t0}")
    a(f"v_and_b32 v{t1}, 0xffff0000, v{t0}")
    a(f"v_add_f32 v{t1}, {f32(1e-5)}, v{t1}")
    a(f"v_cvt_pk_bf16_f32 v{t1}, v{t1}, v{t1}")
    a(f"v_lshlrev_b32 v{t1}, 16, v{t1}")
    a(f"v_sqrt_f32 v{t1}, v{t1}")
    a(f"v_cvt_pk_bf16_f32 v{t1}, v{t1}, v{t1}")
    a(f"v_lshlrev_b32 v{t1}, 16, v{t1}")
    a(f"v_rcp_f32 v{vrinv}, v{t1}")


K1_NSTAT, K1_NW1, K1_NW2 = 128, 88, 86


def gen_k1(a):
    kernel_begin(a, "k1_kernel")
    tot = K1_NSTAT + K1_NW1 + K1_NW2
    a(f"s_cmp_ge_u32 s2, {tot}")
    a("s_cbranch_scc1 K1_END")
    a(f"s_load_dwordx2 s[4:5], s[0:1], {KA_X}")
    a(f"s_load_dwordx4 s[8:11], s[0:1], {KA_WG}")
    a(f"s_load_dwordx2 s[12:13], s[0:1], {KA_WD}")
    a(f"s_load_dwordx2 s[14:15], s[0:1], {KA_WS}")
    wave_id(a, 3, 1)
    a("v_and_b32 v1, 63, v0")
    a(f"s_mov_b32 s30, 0x{ONES:x}")
    a("s_waitcnt lgkmcnt(0)")
    a(f"s_cmp_ge_u32 s2, {K1_NSTAT}")
    a("s_cbranch_scc1 K1_REPACK")
    srd(a, 16, 4, 2048 * 1024)
    srd(a, 20, 14, SZ_STATS, WS_STATS)
    a("v_lshrrev_b32 v2, 4, v0")
    a("v_and_b32 v3, 15, v0")
    a("v_lshlrev_b32 v4, 10, v2")
    a("v_lshl_add_u32 v4, v3, 4, v4")
    a("s_lshl_b32 s24, s2, 14")
    for i in range(4):
        a(f"buffer_load_dwordx4 v[{8+4*i}:{11+4*i}], v4, s[16:19], s24 offen offset:{256*i}")
    a("v_mov_b32 v24, 0")
    a("v_mov_b32 v25, 0")
    for i in range(4):
        a(f"s_waitcnt vmcnt({3-i})")
        for j in range(4):
            r = 8 + 4 * i + j
            a(f"v_dot2_f32_bf16 v24, v{r}, s30, v24")
            a(f"v_dot2_f32_bf16 v25, v{r}, v{r}, v25")
    for sh in (8, 4, 2, 1):
        a(f"v_add_f32_dpp v24, v24, v24 row_ror:{sh} row_mask:0xf bank_mask:0xf")
        a(f"v_add_f32_dpp v25, v25, v25 row_ror:{sh} row_mask:0xf bank_mask:0xf")
    ln_final(a, 24, 25, 26, 27, 28, 29)
    a("v_lshlrev_b32 v5, 3, v2")
    a("s_lshl_b32 s24, s2, 7")
    a("v_cmp_eq_u32 vcc, 0, v3")
    a("s_and_saveexec_b64 s[26:27], vcc")
    a("buffer_store_dwordx2 v[28:29], v5, s[20:23], s24 offen")
    a("s_endpgm")
    a.label("K1_REPACK")
    a.reset()
    a("v_bfe_u32 v2, v1, 4, 1")
    a("v_lshrrev_b32 v3, 5, v1")
    a("v_bfe_u32 v4, v1, 2, 2")
    a("v_and_b32 v5, 3, v1")
    a("v_lshlrev_b32 v6, 4, v1")
    a(f"s_cmp_ge_u32 s2, {K1_NSTAT + K1_NW1}")
    a("s_cbranch_scc1 K1_W2")
    a(f"s_sub_u32 s24, s2, {K1_NSTAT}")
    a("s_lshr_b32 s25, s24, 2")
    a("s_and_b32 s26, s24, 3")
    a("s_cmp_ge_u32 s3, 2")
    a("s_cselect_b32 s16, s10, s8")
    a("s_cselect_b32 s17, s11, s9")
    a(f"s_mov_b32 s18, {512*2752}")
    a("s_mov_b32 s19, 0x20000")
    srd(a, 20, 14, SZ_W1P, WS_W1P)
    a("v_lshrrev_b32 v7, 3, v1")
    a("v_mul_u32_u24 v7, 2752, v7")
    a("v_and_b32 v8, 7, v1")
    a("v_lshl_add_u32 v7, v8, 4, v7")
    a("s_and_b32 s27, s3, 1")
    a("s_lshl_b32 s28, s26, 1")
    a("s_add_u32 s28, s28, s27")
    a(f"s_mul_i32 s28, s28, {64*2752}")
    a("s_lshl_b32 s29, s25, 7")
    a("s_add_u32 s28, s28, s29")
    a("s_lshl_b32 s29, s3, 13")
    for i in range(8):
        a(f"s_add_u32 m0, s29, {1024*i}")
        a(f"buffer_load_dwordx4 v7, s[16:19], s28 offen lds")
        if i < 7:
            a(f"s_add_u32 s28, s28, {8*2752}")
    a("v_lshlrev_b32 v9, 14, v2")
    a("v_lshl_add_u32 v10, v3, 3, v4")
    a("v_lshl_add_u32 v9, v10, 7, v9")
    a("v_lshl_add_u32 v9, v5, 3, v9")
    a("s_lshl_b32 s29, s3, 5")
    a("v_add_u32 v9, s29, v9")
    a("s_lshl_b32 s27, s25, 2")
    a("s_add_u32 s27, s27, s3")
    a("s_waitcnt vmcnt(0)")
    a("s_barrier")
    a("s_cmp_ge_u32 s27, 86")
    a("s_cbranch_scc1 K1_END")
    for ks in range(8):
        for t in range(2):
            a(f"ds_read_b64_tr_b16 v[{16+4*ks+2*t}:{17+4*ks+2*t}], v9 offset:{ks*2048+t*512}")
    a(f"s_mul_i32 s28, s27, {33*1024}")
    a("s_lshl_b32 s29, s26, 13")
    a("s_add_u32 s29, s28, s29")
    a("v_mov_b32 v12, 0")
    a("v_add_u32 v11, 0x1000, v6")
    for ks in range(8):
        a(f"s_waitcnt lgkmcnt({14-2*ks})")
        vo = 6 if ks < 4 else 11
        a(f"buffer_store_dwordx4 v[{16+4*ks}:{19+4*ks}], v{vo}, s[20:23], s29 offen offset:{(ks%4)*1024}")
        for j in range(4):
            a(f"v_dot2_f32_bf16 v12, v{16+4*ks+j}, s30, v12")
    a("v_cvt_pk_bf16_f32 v13, v12, v12")
    a("v_lshlrev_b32 v13, 16, v13")
    a("v_sub_f32 v14, v12, v13")
    a("v_cvt_pk_bf16_f32 v13, v13, v14")
    a("s_lshl_b32 s29, s26, 2")
    a("s_add_u32 s28, s28, s29")
    a(f"s_add_u32 s28, s28, {32*1024}")
    a("buffer_store_dword v13, v6, s[20:23], s28 offen")
    a("s_endpgm")
    a.label("K1_W2")
    a.reset()
    a(f"s_sub_u32 s24, s2, {K1_NSTAT + K1_NW1}")
    srd(a, 16, 12, 1376 * 1024)
    srd(a, 20, 14, SZ_W2P, WS_W2P)
    a("s_lshl_b32 s28, s24, 14")
    a("s_lshl_b32 s29, s3, 12")
    a("s_add_u32 s28, s28, s29")
    a("s_mov_b32 m0, s29")
    for i in range(4):
        a(f"buffer_load_dwordx4 v6, s[16:19], s28 offen offset:{1024*i} lds")
    a("v_lshl_add_u32 v10, v3, 2, v4")
    a("v_lshlrev_b32 v9, 10, v10")
    a("v_lshl_add_u32 v9, v2, 5, v9")
    a("v_lshl_add_u32 v9, v5, 3, v9")
    a("s_lshl_b32 s29, s3, 8")
    a("v_add_u32 v9, s29, v9")
    a("s_waitcnt vmcnt(0)")
    a("s_barrier")
    for i in range(4):
        for t in range(2):
            a(f"ds_read_b64_tr_b16 v[{16+4*i+2*t}:{17+4*i+2*t}], v9 offset:{i*64+t*8192}")
    a(f"s_mul_i32 s28, s3, {4*86*1024}")
    a("s_lshl_b32 s29, s24, 10")
    a("s_add_u32 s28, s28, s29")
    for i in range(4):
        a(f"s_waitcnt lgkmcnt({6-2*i})")
        a(f"buffer_store_dwordx4 v[{16+4*i}:{19+4*i}], v6, s[20:23], s28 offen")
        if i < 3:
            a(f"s_add_u32 s28, s28, {86*1024}")
    a.label("K1_END")
    a("s_endpgm")
    kernel_desc(a, "k1_kernel", 48, 40)
    return f"; @launch kernel=k1_kernel grid=({tot},1,1) block=(256,1,1) lds=32768"


GS = 1040
L_TAB = 0
TABC = 32 * GS
L_RK = 2 * TABC
RKC = 8320
L_UL = L_RK + 2 * RKC
ULC = 4608
K2_LDS = L_UL + 2 * ULC
L_RED = 0

LOG2E = math.log2(math.e)


def split_hi(x, bits):
    m, e = math.frexp(x)
    hi = math.ldexp(round(math.ldexp(m, bits)), e - bits)
    return hi, x - hi


def exp_bf16(a, vx, vo, t0):
    hi, lo = split_hi(LOG2E, 15)
    a(f"v_mul_f32 v{vo}, {f32(hi)}, v{vx}")
    a(f"v_mul_f32 v{t0}, {f32(lo * math.log(2))}, v{vx}")
    a(f"v_exp_f32 v{vo}, v{vo}")
    a(f"v_fma_f32 v{vo}, v{vo}, v{t0}, v{vo}")
    a(f"v_cvt_pk_bf16_f32 v{vo}, v{vo}, v{vo}")
    a(f"v_lshlrev_b32 v{vo}, 16, v{vo}")


def cmul(a, d, x, y, t):
    a(f"v_pk_mul_f32 v[{t}:{t+1}], v[{x}:{x+1}], v[{y}:{y+1}] op_sel:[0,0] op_sel_hi:[0,1]")
    a(f"v_pk_fma_f32 v[{d}:{d+1}], v[{x}:{x+1}], v[{y}:{y+1}], v[{t}:{t+1}] op_sel:[1,1,0] op_sel_hi:[1,0,1] neg_lo:[1,0,0]")


def gen_k2(a):
    kernel_begin(a, "k2_kernel")
    a("s_cmp_ge_u32 s2, 256")
    a("s_cbranch_scc1 K2_END")
    a(f"s_load_dwordx16 s[4:19], s[0:1], 0")
    a(f"s_load_dwordx2 s[20:21], s[0:1], {KA_WS}")
    wave_id(a, 3, 1)
    a("v_and_b32 v1, 63, v0")
    a("s_and_b32 s22, s2, 7")
    a("s_lshl_b32 s22, s22, 5")
    a("s_lshr_b32 s23, s2, 3")
    a("s_add_u32 s22, s22, s23")
    a("s_lshr_b32 s24, s3, 1")
    a("s_and_b32 s25, s3, 1")
    a("s_waitcnt lgkmcnt(0)")
    srd(a, 28, 4, 2048 * 1024)
    srd(a, 32, 6, 512 * 256)
    srd(a, 36, 8, 512 * 256)
    srd(a, 40, 10, 512 * 256)
    srd(a, 44, 12, 512 * 256)
    srd(a, 48, 20, SZ_STATS, WS_STATS)
    srd(a, 52, 20, SZ_HP, WS_HP)
    a("s_lshl_b32 s26, s22, 9")
    a("v_lshlrev_b32 v2, 1, v0")
    a("buffer_load_ushort v4, v2, s[32:35], s26 offen")
    a("buffer_load_ushort v5, v2, s[36:39], s26 offen")
    a("buffer_load_ushort v6, v2, s[40:43], s26 offen")
    a("buffer_load_ushort v7, v2, s[44:47], s26 offen")
    a("s_lshl_b32 s27, s22, 2")
    a("s_load_dword s56, s[14:15], s27")
    a("s_load_dword s57, s[16:17], s27")
    XP = 224
    ST = 232
    a("v_lshlrev_b32 v3, 12, v0")
    a(f"s_add_u32 s58, s27, 0x100000")
    for i in range(4):
        a(f"buffer_load_dword v{XP+i}, v3, s[28:31], s27 offen offset:{1024*i}")
    for i in range(4):
        a(f"buffer_load_dword v{XP+4+i}, v3, s[28:31], s58 offen offset:{1024*i}")
    a("v_lshlrev_b32 v3, 5, v0")
    a("s_mov_b32 s59, 8192")
    a(f"buffer_load_dwordx4 v[{ST}:{ST+3}], v3, s[48:51], 0 offen")
    a(f"buffer_load_dwordx4 v[{ST+4}:{ST+7}], v3, s[48:51], 0 offen offset:16")
    a(f"buffer_load_dwordx4 v[{ST+8}:{ST+11}], v3, s[48:51], s59 offen")
    a(f"buffer_load_dwordx4 v[{ST+12}:{ST+15}], v3, s[48:51], s59 offen offset:16")
    a("v_mov_b32 v8, 0")
    a("v_lshlrev_b32 v3, 2, v0")
    a("v_and_b32 v9, 0x1fc, v3")
    a("v_lshrrev_b32 v10, 7, v0")
    a(f"v_mul_u32_u24 v10, {ULC}, v10")
    a("v_add_u32 v9, v9, v10")
    a(f"ds_write_b32 v9, v8 offset:{L_UL - 65536 if L_UL >= 65536 else L_UL}" if False else
      f"v_add_u32 v9, {L_UL}, v9")
    a("ds_write_b32 v9, v8")
    a("v_and_b32 v9, 31, v0")
    a("v_min_u32 v9, 16, v9")
    a("v_lshlrev_b32 v9, 2, v9")
    a("v_bfe_u32 v10, v0, 5, 2")
    a("v_mul_u32_u24 v10, 4160, v10")
    a("v_add_u32 v9, v9, v10")
    a(f"v_add_u32 v9, {L_RK + 4092}, v9")
    a("ds_write_b32 v9, v8")
    a("v_bfe_u32 v9, v0, 2, 5")
    a(f"v_mul_u32_u24 v9, {GS}, v9")
    a("v_and_b32 v10, 3, v0")
    a("v_lshl_add_u32 v9, v10, 2, v9")
    a(f"s_mul_i32 s60, s24, {TABC}")
    a("v_add_u32 v9, s60, v9")
    a("s_waitcnt lgkmcnt(0)")
    a("s_lshl_b32 s61, s24, 4")
    a("s_lshr_b32 s61, s56, s61")
    a("s_lshl_b32 s61, s61, 16")
    a("v_mov_b32 v10, s61")
    exp_bf16(a, 10, 11, 12)
    a("s_waitcnt vmcnt(12)")
    for r in (4, 5, 6, 7):
        a(f"v_lshlrev_b32 v{r}, 16, v{r}")
    exp_bf16(a, 4, 12, 13)
    a("v_mul_f32 v12, v12, v11")
    a(f"v_mul_f32 v12, {f32(-LOG2E)}, v12")
    a("v_mul_f32 v5, v5, v11")
    chi, clo = split_hi(1 / (2 * math.pi), 8)
    a(f"v_mul_f32 v13, {f32(chi)}, v5")
    a(f"v_mul_f32 v14, {f32(clo)}, v5")
    a("v_add_f32 v11, v11, v11")
    X0 = 100
    Y0 = 24
    a(f"v_mul_f32 v{X0}, v6, v11")
    a(f"v_mul_f32 v{X0+1}, v7, v11")

    def anchor(d, p):
        a(f"v_mul_f32 v15, {f32(p)}, v12")
        a(f"v_mul_f32 v16, {f32(p)}, v13")
        a("v_exp_f32 v15, v15")
        a("v_fract_f32 v16, v16")
        a(f"v_fmac_f32 v16, {f32(p)}, v14")
        a(f"v_cos_f32 v{d}, v16")
        a(f"v_sin_f32 v{d+1}, v16")
        a(f"v_mul_f32 v{d}, v{d}, v15")
        a(f"v_mul_f32 v{d+1}, v{d+1}, v15")

    Y = lambda b: Y0 + 2 * b
    X = lambda r: X0 + 2 * r
    E1, E2, E4, E256 = 18, 20, 22, 90
    anchor(Y(1), 8.0)
    anchor(Y(8), 64.0)
    anchor(E1, 1.0)
    anchor(E256, 256.0)
    a(f"v_mov_b32 v{Y(0)}, 1.0")
    a(f"v_mov_b32 v{Y(0)+1}, 0")
    cm = lambda d, x, y: cmul(a, d, x, y, d)
    cm(Y(2), Y(1), Y(1))
    cm(Y(16), Y(8), Y(8))
    cm(E2, E1, E1)
    cm(X(8), X(0), E256)
    cm(Y(3), Y(2), Y(1))
    cm(Y(4), Y(2), Y(2))
    cm(Y(24), Y(16), Y(8))
    cm(E4, E2, E2)
    cm(X(13), X(8), E256)
    cm(X(1), X(0), E1)
    cm(X(2), X(0), E2)
    cm(Y(5), Y(4), Y(1))
    cm(Y(6), Y(4), Y(2))
    cm(Y(7), Y(4), Y(3))
    cm(X(16), X(13), E256)
    cm(X(3), X(1), E2)
    cm(X(4), X(0), E4)
    cm(X(5), X(1), E4)
    cm(X(6), X(2), E4)
    cm(X(19), X(16), E256)
    cm(X(7), X(3), E4)
    cm(X(9), X(8), E2)
    cm(X(10), X(8), E4)
    cm(X(12), X(8), Y(1))
    cm(X(21), X(19), E256)
    cm(X(11), X(9), E4)
    cm(X(14), X(13), E4)
    cm(X(15), X(13), Y(1))
    cm(X(23), X(21), E256)
    cm(X(17), X(16), E4)
    cm(X(18), X(16), Y(1))
    cm(X(20), X(19), Y(1))
    cm(X(25), X(23), E256)
    cm(X(22), X(21), Y(1))
    cm(X(24), X(23), Y(1))
    cm(X(26), X(25), Y(1))
    for j in (8, 16, 24):
        for i in range(1, 8):
            cm(Y(j + i), Y(j), Y(i))
    for b in range(0, 32, 2):
        a(f"v_cvt_pk_bf16_f32 v{Y(b)}, v{Y(b)}, v{Y(b)+1}")
        a(f"v_cvt_pk_bf16_f32 v{Y(b+1)}, v{Y(b+1)}, v{Y(b+1)+1}")
        a(f"ds_write2_b32 v9, v{Y(b)}, v{Y(b+1)} offset0:{4*b} offset1:{4*b+4}")
    for r in range(0, 27, 2):
        a(f"v_cvt_pk_bf16_f32 v{X(r)}, v{X(r)}, -v{X(r)+1}")
        if r + 1 < 27:
            a(f"v_cvt_pk_bf16_f32 v{X(r+1)}, v{X(r+1)}, -v{X(r+1)+1}")
            a(f"ds_write2_b32 v9, v{X(r)}, v{X(r+1)} offset0:{4*(32+r)} offset1:{4*(33+r)}")
        else:
            a(f"ds_write_b32 v9, v{X(r)} offset:{16*(32+r)}")
    def nib(lst):
        v = 0
        for ip in range(8):
            v |= lst[7 - ip] << (4 * ip)
        return v
    n0 = nib([0, 1, 2, 3, 4, 5, 6, 7])
    n1 = nib([0, 0, 1, 2, 2, 2, 3, 4])
    n2 = nib([0, 0, 0, 1, 1, 1, 2, 2])
    n3 = nib([0, 0, 0, 0, 0, 1, 1, 1])
    base0 = 0 | (8 << 8) | (13 << 16) | (16 << 24)
    base1 = 19 | (21 << 8) | (23 << 16) | (25 << 24)
    a("s_cmp_eq_u32 s25, 0")
    a(f"s_cselect_b32 s62, 0x{n0:x}, 0x{n3:x}" if False else f"s_mov_b32 s66, 0x{n3:x}")
    a(f"s_cselect_b32 s62, 0x{n0:x}, s66")
    a(f"s_cselect_b32 s63, 0x{n1:x}, s66")
    a(f"s_cselect_b32 s64, 0x{n2:x}, s66")
    a(f"s_mov_b32 s66, 0x{base1:x}")
    a(f"s_cselect_b32 s65, 0x{base0:x}, s66")
    a("v_bfe_u32 v10, v1, 3, 2")
    a("v_and_b32 v11, 7, v1")
    a("v_mov_b32 v12, s64")
    a("v_mov_b32 v13, s63")
    a("v_mov_b32 v14, s62")
    a("v_cmp_eq_u32 vcc, 1, v10")
    a("v_cndmask_b32 v12, v12, v13, vcc")
    a("v_cmp_eq_u32 vcc, 0, v10")
    a("v_cndmask_b32 v12, v12, v14, vcc")
    a("v_lshlrev_b32 v11, 2, v11")
    a("v_lshrrev_b32 v12, v11, v12")
    a("v_and_b32 v12, 15, v12")
    a("v_lshlrev_b32 v10, 3, v10")
    a("v_lshrrev_b32 v13, v10, s65")
    a("v_and_b32 v13, 0xff, v13")
    a("v_add3_u32 v12, v12, v13, 32")
    a("v_lshrrev_b32 v13, 5, v1")
    a(f"v_mul_u32_u24 v13, {GS}, v13")
    a("v_add_u32 v13, s60, v13")
    a("v_lshl_add_u32 v12, v12, 4, v13")
    a("v_and_b32 v14, 31, v1")
    a("v_lshl_add_u32 v13, v14, 4, v13")
    a("s_waitcnt lgkmcnt(0)")
    a("s_barrier")
    FA, FB, ACC = 24, 88, 160
    for ks in range(16):
        a(f"ds_read_b128 v[{FA+4*ks}:{FA+4*ks+3}], v12 offset:{2*GS*ks}")
        a(f"ds_read_b128 v[{FB+4*ks}:{FB+4*ks+3}], v13 offset:{2*GS*ks}")
        if ks >= 5:
            k = ks - 5
            a("s_waitcnt lgkmcnt(10)")
            a(f"v_mfma_f32_32x32x16_bf16 v[{ACC}:{ACC+15}], v[{FA+4*k}:{FA+4*k+3}], v[{FB+4*k}:{FB+4*k+3}], "
              + ("0" if k == 0 else f"v[{ACC}:{ACC+15}]"))
    for k in range(11, 16):
        a(f"s_waitcnt lgkmcnt({2*(15-k)})")
        a(f"v_mfma_f32_32x32x16_bf16 v[{ACC}:{ACC+15}], v[{FA+4*k}:{FA+4*k+3}], v[{FB+4*k}:{FB+4*k+3}], v[{ACC}:{ACC+15}]")
    a("s_waitcnt vmcnt(0)")
    XF = 176
    UD = 192
    UP = 208
    a("s_lshl_b32 s66, s57, 16")
    a("s_and_b32 s67, s57, 0xffff0000")
    for i in range(8):
        m, ri = ST + 2 * i, ST + 2 * i + 1
        x0, x1 = XF + 2 * i, XF + 2 * i + 1
        a(f"v_lshlrev_b32 v{x0}, 16, v{XP+i}")
        a(f"v_and_b32 v{x1}, 0xffff0000, v{XP+i}")
        a(f"v_sub_f32 v16, v{x0}, v{m}")
        a(f"v_sub_f32 v17, v{x1}, v{m}")
        a("v_cvt_pk_bf16_f32 v16, v16, v17")
        a("v_and_b32 v17, 0xffff0000, v16")
        a("v_lshlrev_b32 v16, 16, v16")
        a(f"v_mul_f32 v16, v16, v{ri}")
        a(f"v_mul_f32 v17, v17, v{ri}")
        a(f"v_cvt_pk_bf16_f32 v{UP+i}, v16, v17")
        a(f"v_lshlrev_b32 v16, 16, v{UP+i}")
        a(f"v_and_b32 v17, 0xffff0000, v{UP+i}")
        a("v_mul_f32 v16, s66, v16")
        a("v_mul_f32 v17, s67, v17")
        a("v_cvt_pk_bf16_f32 v16, v16, v17")
        a(f"v_lshlrev_b32 v{UD+2*i}, 16, v16")
        a(f"v_and_b32 v{UD+2*i+1}, 0xffff0000, v16")
    a("s_mov_b32 s66, 0x05040100")
    a("s_mov_b32 s67, 0x07060302")
    a("v_lshlrev_b32 v15, 3, v0")
    a(f"v_add_u32 v15, {L_UL + 512}, v15")
    for g in range(2):
        u = UP + 4 * g
        a(f"v_perm_b32 v16, v{u+1}, v{u}, s66")
        a(f"v_perm_b32 v17, v{u+3}, v{u+2}, s66")
        a(f"v_perm_b32 v18, v{u+1}, v{u}, s67")
        a(f"v_perm_b32 v19, v{u+3}, v{u+2}, s67")
        a(f"ds_write_b64 v15, v[16:17] offset:{2048*g}")
        a(f"ds_write_b64 v15, v[18:19] offset:{2048*g + ULC}")
    a("v_and_b32 v10, 31, v1")
    a("v_lshrrev_b32 v11, 5, v1")
    a("v_lshlrev_b32 v12, 3, v11")
    a("v_lshlrev_b32 v13, 4, v10")
    a("v_sub_u32 v12, v12, v13")
    a(f"s_mul_i32 s62, s24, {RKC}")
    a("s_lshl_b32 s63, s25, 11")
    a("s_sub_u32 s62, s62, s63")
    a(f"s_add_u32 s62, s62, {L_RK + 4080 - 3*512}")
    a("v_add_u32 v12, s62, v12")
    a("v_and_b32 v13, 33, v1")
    a("s_sub_u32 s63, 2, s25")
    a("v_cmp_eq_u32 vcc, s63, v13")
    for q in range(4):
        r = ACC + 4 * q
        off = (3 - q) * 512
        a(f"v_cndmask_b32 v{r+3}, v{r+3}, v{r+2}, vcc")
        a(f"v_cvt_pk_bf16_f32 v16, v{r}, v{r+1}")
        a(f"v_cvt_pk_bf16_f32 v17, v{r+2}, v{r+3}")
        a(f"v_cvt_pk_bf16_f32 v18, v{r+1}, v{r+2}")
        a(f"ds_write_b64 v12, v[16:17] offset:{off}")
        a(f"ds_write_b16 v12, v16 offset:{off + 4160 - 2}")
        a(f"ds_write_b32 v12, v18 offset:{off + 4160}")
        a(f"ds_write_b16_d16_hi v12, v17 offset:{off + 4160 + 4}")
    a("v_and_b32 v10, 15, v1")
    a("v_lshrrev_b32 v11, 4, v1")
    a("v_lshlrev_b32 v12, 3, v11")
    a("v_sub_u32 v12, v12, v10")
    a("v_lshlrev_b32 v12, 1, v12")
    a("v_and_b32 v13, 1, v10")
    a("v_xor_b32 v13, 1, v13")
    a("v_mul_u32_u24 v13, 4158, v13")
    a("v_add_u32 v12, v12, v13")
    a(f"s_mul_i32 s62, s24, {RKC}")
    a("s_lshl_b32 s63, s25, 8")
    a("s_sub_u32 s62, s62, s63")
    AB = 4
    for i in range(4):
        a(f"s_add_u32 s64, s62, {L_RK + 4062 - 512*(2*i+1) - 192}")
        a(f"v_add_u32 v{AB+i}, s64, v12")
    a("v_lshlrev_b32 v8, 5, v10")
    a("v_lshl_add_u32 v8, v11, 4, v8")
    a(f"s_mul_i32 s64, s24, {ULC}")
    a("s_sub_u32 s64, s64, s63")
    a(f"s_add_u32 s64, s64, {L_UL + 480 - 192}")
    a("v_add_u32 v8, s64, v8")
    a("s_waitcnt lgkmcnt(0)")
    a("s_barrier")
    CA = [24, 88]
    CB = [56, 120]
    ACC = 152
    def loads(it):
        s = it & 1
        out = []
        order = []
        for i in range(8):
            order += [("A", i), ("B", i)]
        for kind, i in order:
            if kind == "A":
                q = i
                o = (512 * (1 - (q & 1)) + 64 * (3 - it)) // 4
                d = CA[s] + 4 * q
                out.append(f"ds_read2_b32 v[{d}:{d+1}], v{AB + q//2} offset0:{o} offset1:{o+1}")
                out.append(f"ds_read2_b32 v[{d+2}:{d+3}], v{AB + q//2} offset0:{o+2} offset1:{o+3}")
            else:
                d = CB[s] + 4 * i
                out.append(f"ds_read_b128 v[{d}:{d+3}], v8 offset:{512*i + 64*(3-it)}")
        return out
    for l in loads(0):
        a(l)
    first = [True] * 8
    for it in range(4):
        s = it & 1
        nxt = loads(it + 1) if it < 3 else []
        a("s_waitcnt lgkmcnt(0)")
        pairs = [(q, v) for q in range(8) for v in range(8 - q)]
        for n, (q, v) in enumerate(pairs):
            nb = q + v
            c = "0" if first[nb] else ar(4 * nb, 4)
            first[nb] = False
            a(f"v_mfma_f32_16x16x32_bf16 {ar(4*nb,4)}, v[{CA[s]+4*q}:{CA[s]+4*q+3}], v[{CB[s]+4*v}:{CB[s]+4*v+3}], {c}")
            if n < len(nxt):
                a(nxt[n])
    a("v_lshlrev_b32 v12, 6, v10")
    a("v_lshl_add_u32 v12, v11, 4, v12")
    a("s_lshl_b32 s62, s3, 13")
    a("v_add_u32 v12, s62, v12")
    for nb in range(8):
        a(f"ds_write_b128 v12, {ar(4*nb,4)} offset:{L_RED + 1024*nb}")
    a("v_lshlrev_b32 v13, 4, v0")
    a("s_waitcnt lgkmcnt(0)")
    a("s_barrier")
    P = 24
    for g in range(2):
        for w in range(4):
            a(f"ds_read_b128 v[{P+16*g+4*w}:{P+16*g+4*w+3}], v13 offset:{L_RED + 8192*w + 4096*g}")
    a("s_lshl_b32 s62, s22, 13")
    a("s_add_u32 s63, s62, 4096")
    for g in range(2):
        a(f"s_waitcnt lgkmcnt({4*(1-g)})")
        for j in range(4):
            i = 4 * g + j
            p = P + 16 * g + j
            a(f"v_add_f32 v16, v{p}, v{p+4}")
            a(f"v_add_f32 v17, v{p+8}, v{p+12}")
            a("v_cvt_pk_bf16_f32 v16, v16, v17")
            a("v_and_b32 v17, 0xffff0000, v16")
            a("v_lshlrev_b32 v16, 16, v16")
            a(f"v_add_f32 v16, v16, v{UD+2*i}")
            a(f"v_add_f32 v17, v17, v{UD+2*i+1}")
            a("v_cvt_pk_bf16_f32 v16, v16, v17")
            a("v_and_b32 v17, 0xffff0000, v16")
            a("v_lshlrev_b32 v16, 16, v16")
            a(f"v_add_f32 v16, v16, v{XF+2*i}")
            a(f"v_add_f32 v17, v17, v{XF+2*i+1}")
            a(f"v_cvt_pk_bf16_f32 v{60+i}, v16, v17")
        a(f"buffer_store_dwordx4 v[{60+4*g}:{63+4*g}], v13, s[52:55], s{62+g} offen")
    a.label("K2_END")
    a("s_endpgm")
    kernel_desc(a, "k2_kernel", 248 + 32, 80, accum=248)
    return f"; @launch kernel=k2_kernel grid=(256,1,1) block=(256,1,1) lds={K2_LDS}"


K3_RING = 6
K3_AHEAD = 5


def gen_k3(a):
    kernel_begin(a, "k3_kernel")
    a("s_cmp_ge_u32 s2, 240")
    a("s_cbranch_scc1 K3_END")
    a(f"s_load_dwordx2 s[20:21], s[0:1], {KA_WS}")
    wave_id(a, 3, 1)
    a("v_and_b32 v1, 63, v0")
    a("s_and_b32 s22, s2, 7")
    a("s_lshr_b32 s23, s2, 3")
    a("s_and_b32 s24, s22, 1")
    a("s_mul_i32 s24, s24, 30")
    a("s_add_u32 s24, s24, s23")
    a("s_lshr_b32 s25, s24, 2")
    a("s_and_b32 s24, s24, 3")
    a("s_lshr_b32 s22, s22, 1")
    a("s_lshl_b32 s22, s22, 2")
    a("s_add_u32 s24, s24, s22")
    a("s_lshl_b32 s26, s24, 2")
    a("s_add_u32 s26, s26, s3")
    a(f"s_mov_b32 s30, 0x{ONES:x}")
    a("s_waitcnt lgkmcnt(0)")
    srd(a, 4, 20, SZ_HP, WS_HP)
    srd(a, 8, 20, SZ_W1P, WS_W1P)
    srd(a, 12, 20, SZ_HM, WS_HM)
    a("v_lshrrev_b32 v2, 5, v1")
    a("v_lshlrev_b32 v2, 15, v2")
    a("v_and_b32 v3, 31, v1")
    a("v_lshl_add_u32 v2, v3, 2, v2")
    for j in range(1, 4):
        a(f"v_add_u32 v{2+j}, {8192*j}, v2")
    a("s_lshl_b32 s27, s26, 7")
    a("v_lshlrev_b32 v6, 4, v1")
    a("s_and_b32 s28, s3, 1")
    a("s_mul_i32 s28, s28, 3")
    a("s_mul_i32 s29, s25, 6")
    a("s_add_u32 s28, s28, s29")
    a("s_mul_i32 s28, s28, 33")
    a("s_lshr_b32 s31, s3, 1")
    a("s_add_u32 s28, s28, s31")
    a("s_lshl_b32 s28, s28, 10")
    a(f"s_add_u32 s32, s28, {33*1024}")
    a(f"s_add_u32 s33, s28, {66*1024}")
    a("s_mul_i32 s34, s3, 3072")
    XR = 128
    FR = [16, 40]

    def issue(st):
        out = []
        slot = st % K3_RING
        for e, sreg in enumerate((28, 32, 33)):
            out.append(f"s_add_u32 m0, s34, {slot*12288 + e*1024}\n"
                       f"buffer_load_dwordx4 v6, s[8:11], s{sreg} offen lds\n"
                       f"s_add_u32 s{sreg}, s{sreg}, 2048")
        for kk in range(2):
            for j in range(4):
                t = f"buffer_load_dword v{XR + 4*(2*st+kk) + j}, v{2+j}, s[4:7], s27 offen"
                if j == 3:
                    t += "\ns_add_u32 s27, s27, 0x10000"
                out.append(t)
        return out

    for st in range(K3_AHEAD):
        for t in issue(st):
            a(t)
    a("v_mov_b32 v8, 0")
    a("v_mov_b32 v9, 0")
    a("v_add_u32 v7, 0x9000, v6")

    def reads(i):
        st, kk = i // 2, i % 2
        slot = st % K3_RING
        out = []
        for blk in range(6):
            off = slot * 12288 + (kk * 6 + blk) * 1024
            base = 6
            if off >= 0x9000:
                off -= 0x9000
                base = 7
            d = FR[i & 1] + 4 * blk
            out.append(f"ds_read_b128 v[{d}:{d+3}], v{base} offset:{off}")
        return out

    a(f"s_waitcnt vmcnt({11*(K3_AHEAD-1)})")
    a("s_barrier")
    for t in reads(0):
        a(t)
    AUG = 64
    issued = K3_AHEAD
    for i in range(32):
        st, kk = i // 2, i % 2
        fill = []
        a("s_waitcnt lgkmcnt(0)")
        if kk == 1 and i < 31:
            outstanding_after = 11 * (issued - (st + 2))
            if issued >= 16 and aug_issued:
                outstanding_after += 6
            a(f"s_waitcnt vmcnt({outstanding_after})")
            a("s_barrier")
        if i == 0:
            aug_issued = False
        if i < 31:
            fill += reads(i + 1)
        late = []
        if kk == 1 and issued < 16:
            late = issue(issued)
            issued += 1
        elif kk == 1 and not aug_issued:
            a(f"s_mul_i32 s35, s25, {6*33*1024}")
            a(f"s_add_u32 s35, s35, {32*1024}")
            for blk in range(6):
                late.append(f"buffer_load_dwordx4 v[{AUG+4*blk}:{AUG+4*blk+3}], v6, s[8:11], s35 offen\n"
                            f"s_add_u32 s35, s35, {33*1024}")
            aug_issued = True
        dots = []
        for j in range(4):
            x = XR + 4 * i + j
            dots.append(f"v_dot2_f32_bf16 v8, v{x}, s30, v8\nv_dot2_f32_bf16 v9, v{x}, v{x}, v9")
        for blk in range(6):
            c = "0" if i == 0 else ar(16 * blk, 16)
            a(f"v_mfma_f32_32x32x16_bf16 {ar(16*blk,16)}, v[{FR[i&1]+4*blk}:{FR[i&1]+4*blk+3}], v[{XR+4*i}:{XR+4*i+3}], {c}")
            if blk < len(fill):
                a(fill[blk])
            if blk < 4:
                a(dots[blk])
            for t in late[2 * blk:2 * blk + 2]:
                a(t)
    a("v_mov_b32 v10, v8")
    a("v_mov_b32 v11, v9")
    a("v_permlane32_swap_b32 v8, v10")
    a("v_permlane32_swap_b32 v9, v11")
    a("v_add_f32 v8, v8, v10")
    a("v_add_f32 v9, v9, v11")
    ln_final(a, 8, 9, 10, 11, 12, 14)
    a("v_mov_b32 v15, v14")
    a("v_cvt_pk_bf16_f32 v16, -v12, -v12")
    a("v_mov_b32 v17, v16")
    a("v_mov_b32 v18, v16")
    a("v_mov_b32 v19, v16")
    a("s_waitcnt vmcnt(0)")
    for blk in range(6):
        a(f"v_mfma_f32_32x32x16_bf16 {ar(16*blk,16)}, v[{AUG+4*blk}:{AUG+4*blk+3}], v[16:19], {ar(16*blk,16)}")
    c1 = -2.0 * LOG2E * math.sqrt(2 / math.pi)
    c3 = c1 * 0.044715
    a(f"s_mov_b32 s36, {f32(c1)}")
    a(f"s_mov_b32 s37, {f32(c1)}")
    a(f"v_mov_b32 v20, {f32(c3)}")
    a(f"v_mov_b32 v21, {f32(c3)}")
    a("s_mul_i32 s35, s26, 86")
    a("s_mul_i32 s38, s25, 6")
    a("s_add_u32 s35, s35, s38")
    a("s_lshl_b32 s35, s35, 10")
    G, U, T, O = 24, 32, 40, 48
    for blk in range(6):
        if blk == 2:
            a("s_cmp_eq_u32 s25, 14")
            a("s_cbranch_scc1 K3_END")
        for r in range(8):
            a(f"v_accvgpr_read_b32 v{G+r}, a{16*blk+r}")
        for r in range(8):
            a(f"v_accvgpr_read_b32 v{U+r}, a{16*blk+8+r}")
        for p in range(4):
            g = G + 2 * p
            a(f"v_pk_mul_f32 v[{g}:{g+1}], v[{g}:{g+1}], v[14:15]")
        for p in range(4):
            g, t = G + 2 * p, T + 2 * p
            a(f"v_pk_mul_f32 v[{t}:{t+1}], v[{g}:{g+1}], v[{g}:{g+1}]")
        for p in range(4):
            t = T + 2 * p
            a(f"v_pk_fma_f32 v[{t}:{t+1}], v[{t}:{t+1}], v[20:21], s[36:37]")
        for p in range(4):
            g, t = G + 2 * p, T + 2 * p
            a(f"v_pk_mul_f32 v[{t}:{t+1}], v[{t}:{t+1}], v[{g}:{g+1}]")
        for r in range(8):
            a(f"v_exp_f32 v{T+r}, v{T+r}")
        for p in range(4):
            u = U + 2 * p
            a(f"v_pk_mul_f32 v[{u}:{u+1}], v[{u}:{u+1}], v[14:15]")
        for p in range(4):
            t = T + 2 * p
            a(f"v_pk_add_f32 v[{t}:{t+1}], v[{t}:{t+1}], 1.0 op_sel_hi:[1,0]")
        for r in range(8):
            a(f"v_rcp_f32 v{T+r}, v{T+r}")
        for p in range(4):
            g, u = G + 2 * p, U + 2 * p
            a(f"v_pk_mul_f32 v[{u}:{u+1}], v[{u}:{u+1}], v[{g}:{g+1}]")
        for p in range(4):
            u, t = U + 2 * p, T + 2 * p
            a(f"v_pk_mul_f32 v[{u}:{u+1}], v[{u}:{u+1}], v[{t}:{t+1}]")
        o = O + 4 * (blk & 1)
        for p in range(4):
            u = U + 2 * p
            a(f"v_cvt_pk_bf16_f32 v{o+p}, v{u}, v{u+1}")
        if blk < 4:
            a(f"buffer_store_dwordx4 v[{o}:{o+3}], v6, s[12:15], s35 offen offset:{1024*blk}")
        else:
            if blk == 4:
                a("s_add_u32 s35, s35, 4096")
            a(f"buffer_store_dwordx4 v[{o}:{o+3}], v6, s[12:15], s35 offen offset:{1024*(blk-4)}")
    a.label("K3_END")
    a("s_endpgm")
    kernel_desc(a, "k3_kernel", 256 + 96, 48, accum=256)
    return f"; @launch kernel=k3_kernel grid=(240,1,1) block=(256,1,1) lds={K3_RING*12288}"


K4_RS = 272
K4_DEPTH = 13


def gen_k4(a):
    kernel_begin(a, "k4_kernel")
    a("s_cmp_ge_u32 s2, 256")
    a("s_cbranch_scc1 K4_END")
    a(f"s_load_dwordx2 s[20:21], s[0:1], {KA_WS}")
    a(f"s_load_dwordx2 s[18:19], s[0:1], {KA_OUT}")
    wave_id(a, 3, 1)
    a("v_and_b32 v1, 63, v0")
    a("s_and_b32 s22, s2, 7")
    a("s_lshr_b32 s23, s2, 3")
    a("s_lshr_b32 s24, s22, 1")
    a("s_lshl_b32 s24, s24, 3")
    a("s_lshr_b32 s25, s23, 2")
    a("s_add_u32 s24, s24, s25")
    a("s_and_b32 s25, s22, 1")
    a("s_lshl_b32 s25, s25, 2")
    a("s_and_b32 s26, s23, 3")
    a("s_add_u32 s25, s25, s26")
    a("s_waitcnt lgkmcnt(0)")
    srd(a, 4, 20, SZ_HM, WS_HM)
    srd(a, 8, 20, SZ_W2P, WS_W2P)
    srd(a, 12, 20, SZ_HP, WS_HP)
    srd(a, 28, 18, 2048 * 1024)
    a("v_lshlrev_b32 v2, 4, v1")
    a(f"v_add_u32 v3, {86*1024}, v2")
    a(f"s_mul_i32 s26, s24, {2*86*1024}")
    a("s_lshl_b32 s27, s3, 10")
    a("s_add_u32 s26, s26, s27")
    a(f"s_mul_i32 s32, s25, {2*86*1024}")
    a("s_add_u32 s32, s32, s27")
    NK = 22
    FB = 40

    def issue(k):
        r = FB + 16 * (k % K4_DEPTH)
        return [f"buffer_load_dwordx4 v[{r}:{r+3}], v2, s[8:11], s32 offen",
                f"buffer_load_dwordx4 v[{r+8}:{r+11}], v2, s[4:7], s26 offen",
                f"buffer_load_dwordx4 v[{r+4}:{r+7}], v3, s[8:11], s32 offen\ns_add_u32 s32, s32, 4096",
                f"buffer_load_dwordx4 v[{r+12}:{r+15}], v3, s[4:7], s26 offen\ns_add_u32 s26, s26, 4096"]

    a("v_and_b32 v4, 7, v0")
    a("v_lshrrev_b32 v5, 3, v0")
    a("v_lshlrev_b32 v6, 15, v4")
    a("v_lshl_add_u32 v6, v5, 2, v6")
    a("s_lshl_b32 s33, s25, 18")
    a("s_lshl_b32 s34, s24, 8")
    a("s_add_u32 s33, s33, s34")
    HR = 8
    for j in range(4):
        for i in range(2):
            a(f"buffer_load_dword v{HR+4*i+j}, v6, s[12:15], s33 offen offset:{128*i}")
        if j < 3:
            a("s_add_u32 s33, s33, 8192")
    for k in range(K4_DEPTH):
        for t in issue(k):
            a(t)
    for k in range(NK):
        inflight = min(NK, k + K4_DEPTH) - (k + 1)
        if k == NK - 1:
            a("s_cmp_ge_u32 s3, 2")
            a("s_cbranch_scc1 K4_RED")
        a(f"s_waitcnt vmcnt({4*inflight})")
        r = FB + 16 * (k % K4_DEPTH)
        for db in range(2):
            for tb in range(2):
                acc = ar(16 * (2 * tb + db), 16)
                a(f"v_mfma_f32_32x32x16_bf16 {acc}, v[{r+4*db}:{r+4*db+3}], v[{r+8+4*tb}:{r+8+4*tb+3}], "
                  + ("0" if k == 0 else acc))
        if k + K4_DEPTH < NK:
            for t in issue(k + K4_DEPTH):
                a(t)
    a.label("K4_RED")
    a.fence(13)
    a("s_waitcnt vmcnt(0)")
    a("v_and_b32 v16, 31, v1")
    a(f"v_mul_u32_u24 v16, {K4_RS}, v16")
    a("v_lshrrev_b32 v17, 5, v1")
    a("v_lshl_add_u32 v16, v17, 4, v16")
    a(f"s_mul_i32 s33, s3, {64*K4_RS}")
    a("v_add_u32 v16, s33, v16")
    for tb in range(2):
        for db in range(2):
            for q in range(4):
                a(f"ds_write_b128 v16, {ar(16*(2*tb+db)+4*q,4)} offset:{tb*32*K4_RS + db*128 + q*32}")
    a(f"v_mul_u32_u24 v17, {K4_RS}, v5")
    a("v_lshl_add_u32 v17, v4, 5, v17")
    a("s_waitcnt lgkmcnt(0)")
    a("s_barrier")
    P = 40
    for i in range(2):
        for w in range(4):
            for hh in range(2):
                d = P + 32 * i + 8 * w + 4 * hh
                a(f"ds_read_b128 v[{d}:{d+3}], v17 offset:{w*64*K4_RS + i*32*K4_RS + hh*16}")
    a("v_lshlrev_b32 v18, 10, v5")
    a("v_lshl_add_u32 v18, v4, 4, v18")
    a("s_lshl_b32 s33, s24, 16")
    a("s_lshl_b32 s34, s25, 7")
    a("s_add_u32 s33, s33, s34")
    a("s_add_u32 s34, s33, 0x8000")
    for i in range(2):
        a(f"s_waitcnt lgkmcnt({8*(1-i)})")
        b = P + 32 * i
        for p in range(4):
            a(f"v_pk_add_f32 v[{b+2*p}:{b+2*p+1}], v[{b+2*p}:{b+2*p+1}], v[{b+8+2*p}:{b+8+2*p+1}]")
            a(f"v_pk_add_f32 v[{b+16+2*p}:{b+16+2*p+1}], v[{b+16+2*p}:{b+16+2*p+1}], v[{b+24+2*p}:{b+24+2*p+1}]")
        for p in range(4):
            a(f"v_pk_add_f32 v[{b+2*p}:{b+2*p+1}], v[{b+2*p}:{b+2*p+1}], v[{b+16+2*p}:{b+16+2*p+1}]")
        for p in range(4):
            h = HR + 4 * i + p
            a(f"v_cvt_pk_bf16_f32 v20, v{b+2*p}, v{b+2*p+1}")
            a("v_and_b32 v21, 0xffff0000, v20")
            a("v_lshlrev_b32 v20, 16, v20")
            a(f"v_lshlrev_b32 v22, 16, v{h}")
            a(f"v_and_b32 v23, 0xffff0000, v{h}")
            a("v_pk_add_f32 v[20:21], v[20:21], v[22:23]")
            a(f"v_cvt_pk_bf16_f32 v{24+4*i+p}, v20, v21")
        a(f"buffer_store_dwordx4 v[{24+4*i}:{27+4*i}], v18, s[28:31], s{33+i} offen")
    a.label("K4_END")
    a("s_endpgm")
    nv = FB + 16 * K4_DEPTH
    kernel_desc(a, "k4_kernel", nv + 64, 48, accum=nv)
    return f"; @launch kernel=k4_kernel grid=(256,1,1) block=(256,1,1) lds={4*64*K4_RS}"


def main():
    a = Asm()
    a.raw('.amdgcn_target "amdgcn-amd-amdhsa--gfx950"')
    launches = [gen_k1(a), gen_k2(a), gen_k3(a), gen_k4(a)]
    hdr = "; generated by work/gen.py (hand-written generator): S4D conv + GEGLU block, 4 launches\n"
    hdr += "\n".join(launches) + "\n"
    out = sys.argv[1] if len(sys.argv) > 1 else f"cdna_kernels/{NAME}.s"
    open(out, "w").write(hdr + a.text())
    print("wrote", out, "lines", len(a.lines), "auto nops", a.nops)


if __name__ == "__main__":
    main()
```
